```python
import torch

def _softmax(x, axis=-1):
    return torch.softmax(x, dim=axis)
def _gelu(x):
    return torch.nn.functional.gelu(x, approximate="tanh")
def _silu(x):
    return torch.nn.functional.silu(x)
def _sigmoid(x):
    return torch.sigmoid(x)
def _layernorm(x, axis=-1, eps=1e-5):
    m = x.mean(dim=axis, keepdim=True)
    v = x.var(dim=axis, keepdim=True, unbiased=False)
    return (x - m) / torch.sqrt(v + eps)
def _scatter_add(tgt, idx, src, axis=0):
    return tgt.clone().index_add_(axis, idx, src)
def _segment_sum(src, seg, n):
    out = torch.zeros((n,) + src.shape[1:], dtype=src.dtype)
    return out.index_add_(0, seg, src)
def _pad(x, pw):
    flat = tuple(v for pair in reversed(pw) for v in pair)
    return torch.nn.functional.pad(x, flat)

kernel_name = 'recurrent_scan__sliding_block__dense_activation_relu__prompt'

def setup_inputs():

    _w = (lambda a: (lambda t: t.to(torch.bfloat16) if t.is_floating_point() else t)(torch.as_tensor(a)))
    def _A_setup():
        B, S, D = 1, 2048, 640
        return {
            "x": _w((lambda *s: torch.randn(*s, dtype=torch.bfloat16) * 0.05)(B, S, D)),
            "wqkv": _w((lambda *s: torch.randn(*s, dtype=torch.bfloat16) * 0.05)(D, 3 * D)),
            "wo": _w((lambda *s: torch.randn(*s, dtype=torch.bfloat16) * 0.05)(D, D)),
        }
    _A_in = _A_setup()

    def _B_setup():
        B, S, D, Dff = 1, 2048, 640, 1728
        return {
            "x": _w((lambda *s: torch.randn(*s, dtype=torch.bfloat16) * 0.05)(B, S, D)),
            "w1": _w((lambda *s: torch.randn(*s, dtype=torch.bfloat16) * 0.05)(D, Dff)),
            "w2": _w((lambda *s: torch.randn(*s, dtype=torch.bfloat16) * 0.05)(Dff, D)),
        }
    _B_in = _B_setup()

    return {
        "A_x": _A_in["x"],
        "A_wqkv": _A_in["wqkv"],
        "A_wo": _A_in["wo"],
        "B_x": _B_in["x"],
        "B_w1": _B_in["w1"],
        "B_w2": _B_in["w2"],
    }

def reference(A_x, A_wqkv, A_wo, B_x, B_w1, B_w2):
    def _A_ref(x, wqkv, wo):
        B, S, D = x.shape
        H = 32; Dh = D // H; W = 256
        qkv = (lambda x, *d: x.permute(*d))((x @ wqkv).reshape(B, S, 3, H, Dh), 2, 0, 3, 1, 4)
        q, k, v = qkv[0], qkv[1], qkv[2]
        scores = torch.einsum("bhqd,bhkd->bhqk", q, k) * (Dh ** -0.5)
        idx = torch.arange(S)
        mask = (idx[:, None] - idx[None, :] >= 0) & (idx[:, None] - idx[None, :] < W)
        scores = torch.where(mask[None, None], scores, -1e9)
        p = _softmax(scores, axis=-1)
        o = torch.einsum("bhqk,bhkd->bhqd", p, v)
        return (lambda x, *d: x.permute(*d))(o, 0, 2, 1, 3).reshape(B, S, D) @ wo

    def _B_ref(x, w1, w2):
        h = torch.einsum("bsd,df->bsf", x, w1)
        zero = torch.zeros_like(h)
        h = torch.maximum(h, zero)
        return torch.einsum("bsf,fd->bsd", h, w2)

    x = A_x
    xn = _layernorm(x, axis=-1)
    s = _A_ref(xn, A_wqkv, A_wo)
    g = _silu(_B_ref(xn, B_w1, B_w2))
    return x + s * g
```

```python
import re

REG_RE = re.compile(r'^(-|abs\()?([vas])(\d+)\)?$')
RNG_RE = re.compile(r'^(-|abs\()?([vas])\[(\d+):(\d+)\]\)?$')

TRANS = ('v_exp_f32', 'v_log_f32', 'v_rcp_f32', 'v_rsq_f32', 'v_sqrt_f32', 'v_sin_f32', 'v_cos_f32', 'v_rcp_iflag_f32')


def regs_of(op):
    op = op.strip()
    m = REG_RE.match(op)
    if m:
        return [m.group(2) + m.group(3)]
    m = RNG_RE.match(op)
    if m:
        return [m.group(2) + str(i) for i in range(int(m.group(3)), int(m.group(4)) + 1)]
    if op in ('vcc', 'exec', 'm0', 'scc'):
        return [op]
    if op in ('vcc_lo', 'vcc_hi'):
        return ['vcc']
    if op in ('exec_lo', 'exec_hi'):
        return ['exec']
    return []


def split_ops(s):
    out, depth, cur = [], 0, ''
    for ch in s:
        if ch in '[(':
            depth += 1
        if ch in '])':
            depth -= 1
        if ch == ',' and depth == 0:
            out.append(cur.strip())
            cur = ''
        else:
            cur += ch
    if cur.strip():
        out.append(cur.strip())
    return out


class Ins:
    __slots__ = ('text', 'mn', 'kind', 'reads', 'writes', 'passes', 'A', 'B', 'C', 'D', 'ldst', 'wide', 'sdata',
                 'isdma', 'vm', 'lg', 'note', 'states', 'ghost')

    def __init__(self, text):
        self.text = text.strip()
        self.reads, self.writes = set(), set()
        self.passes = 0
        self.A = self.B = self.C = self.D = None
        self.ldst = set()
        self.wide = False
        self.sdata = set()
        self.isdma = False
        self.vm = self.lg = None
        self.states = 1
        self.ghost = False
        t = self.text
        if t.endswith(':'):
            self.kind, self.mn, self.states = 'label', '', 0
            return
        if t.startswith('.') or t.startswith(';'):
            self.kind, self.mn, self.states = 'dir', '', 0
            return
        parts = t.split(None, 1)
        mn = parts[0]
        self.mn = mn
        rest = parts[1] if len(parts) > 1 else ''
        ops = split_ops(rest)
        if ops:
            toks = ops[-1].split()
            mods = toks[1:]
            ops[-1] = toks[0]
        else:
            mods = []
        R = lambda o: set(regs_of(o))
        if mn.startswith('v_mfma'):
            self.kind = 'mfma'
            self.D, self.A, self.B, self.C = R(ops[0]), R(ops[1]), R(ops[2]), R(ops[3])
            self.reads = self.A | self.B | self.C
            self.writes = set(self.D)
            self.passes = 8 if '32x32' in mn else (4 if '16x16' in mn else 2)
        elif mn.startswith('buffer_') or mn.startswith('global_'):
            self.kind = 'vmem'
            if mn in ('buffer_wbl2', 'buffer_inv'):
                pass
            elif 'lds' in mods:
                self.isdma = True
                for o in ops:
                    self.reads |= R(o)
                self.reads.add('m0')
            elif '_load_' in mn:
                self.ldst = R(ops[0])
                self.writes = set(self.ldst)
                for o in ops[1:]:
                    self.reads |= R(o)
            elif '_store_' in mn:
                for o in ops:
                    self.reads |= R(o)
                data = ops[0] if mn.startswith('buffer_') else ops[1]
                self.sdata = R(data)
                self.wide = mn.endswith('x4') or mn.endswith('x3')
            elif '_atomic_' in mn:
                for o in ops:
                    self.reads |= R(o)
                if 'sc0' in mods:
                    self.ldst = R(ops[0])
                    self.writes = set(self.ldst)
            else:
                raise ValueError(t)
        elif mn.startswith('ds_'):
            self.kind = 'ds'
            if mn.startswith('ds_read') or 'permute' in mn or 'swizzle' in mn:
                self.ldst = R(ops[0])
                self.writes = set(self.ldst)
                for o in ops[1:]:
                    self.reads |= R(o)
            else:
                for o in ops:
                    self.reads |= R(o)
        elif mn.startswith('s_load') or mn in ('s_memtime', 's_memrealtime'):
            self.kind = 'smem'
            self.ldst = R(ops[0])
            self.writes = set(self.ldst)
            for o in ops[1:]:
                self.reads |= R(o)
        elif mn == 's_waitcnt':
            self.kind = 'wait'
        elif mn == 's_nop':
            self.kind = 'nop'
            self.states = int(ops[0], 0) + 1
        elif mn == 's_barrier':
            self.kind = 'barrier'
        elif mn.startswith('s_cbranch') or mn in ('s_branch', 's_endpgm', 's_setpc_b64'):
            self.kind = 'branch'
            if 'vcc' in mn:
                self.reads.add('vcc')
            if 'scc' in mn:
                self.reads.add('scc')
            if 'exec' in mn:
                self.reads.add('exec')
        elif mn in ('s_setprio', 's_sleep'):
            self.kind = 'salu'
        elif mn.startswith('s_cmp') or mn.startswith('s_bitcmp'):
            self.kind = 'salu'
            for o in ops:
                self.reads |= R(o)
            self.writes.add('scc')
        elif mn.startswith('s_'):
            self.kind = 'salu'
            self.writes = R(ops[0])
            for o in ops[1:]:
                self.reads |= R(o)
            if mn.startswith('s_cselect') or mn.startswith('s_addc') or mn.startswith('s_subb'):
                self.reads.add('scc')
            if mn in ('s_addk_i32', 's_mulk_i32'):
                self.reads |= self.writes
            if not (mn.startswith('s_mov') or mn.startswith('s_mul') or mn.startswith('s_cselect')
                    or mn.startswith('s_getpc') or mn.startswith('s_getreg')):
                self.writes.add('scc')
            if 'saveexec' in mn:
                self.writes.add('exec')
                self.reads.add('exec')
        elif mn.startswith('v_'):
            self.kind = 'valu'
            if mn.startswith('v_permlane') and 'swap' in mn:
                self.writes = R(ops[0]) | R(ops[1])
                self.reads = R(ops[0]) | R(ops[1])
            elif mn.startswith('v_add_co') or mn.startswith('v_addc_co') or mn.startswith('v_sub_co'):
                self.writes = R(ops[0]) | R(ops[1])
                for o in ops[2:]:
                    self.reads |= R(o)
            elif mn == 'v_nop':
                pass
            else:
                self.writes = R(ops[0])
                for o in ops[1:]:
                    self.reads |= R(o)
                if mn.startswith('v_fmac') or mn.startswith('v_dot2c') or mn.startswith('v_writelane'):
                    self.reads |= self.writes
        else:
            raise ValueError('unknown instruction: ' + t)

    def __repr__(self):
        return self.text


class Wait:
    kind = 'pwait'

    def __init__(self, *ins, vm0=False, lg0=False):
        self.ins = [i for i in ins if i is not None]
        self.vm0, self.lg0 = vm0, lg0


class Ghost:
    kind = 'ghost'

    def __init__(self, begin):
        self.begin = begin


def ghost(cond_branch, body, label):
    return [I(cond_branch + ' ' + label), Ghost(True), flatten(body), Ghost(False), I(label + ':')]


class Reset:
    kind = 'reset'


def I(text):
    return Ins(text)


def Is(text):
    return [Ins(l) for l in text.strip().split('\n') if l.strip()]


def flatten(x):
    out = []
    if isinstance(x, (list, tuple)):
        for y in x:
            out += flatten(y)
    elif isinstance(x, str):
        out += Is(x)
    elif x is not None:
        out.append(x)
    return out


D_RAW = {2: 5, 4: 8, 8: 12}
D_COV = {2: 4, 4: 6, 8: 10}
C_WAR = {2: 1, 4: 3, 8: 7}


def is_sg(r):
    return r[0] == 's' and r != 'scc' or r == 'vcc'


def need_states(p, c):
    n = 0
    if p.kind == 'valu':
        vw = {r for r in p.writes if r[0] in 'va' and r != 'vcc'}
        sw = {r for r in p.writes if is_sg(r)}
        if c.kind == 'mfma' and vw & c.reads:
            n = max(n, 2)
        if c.kind == 'valu':
            if c.mn.startswith('v_permlane') and vw & c.reads:
                n = max(n, 2)
            if ('dpp' in c.text or 'row_' in c.text or 'quad_perm' in c.text) and vw & c.reads:
                n = max(n, 2)
            if (c.mn.startswith('v_readlane') or c.mn.startswith('v_readfirstlane')) and vw & c.reads:
                n = max(n, 1)
            if any(p.mn.startswith(t) for t in TRANS) and vw & c.reads:
                n = max(n, 1)
            if sw & c.reads:
                n = max(n, 4 if (c.mn.startswith('v_readlane') or c.mn.startswith('v_writelane')) else 2)
        if c.kind == 'vmem' and sw & c.reads:
            n = max(n, 5)
        if c.kind in ('salu', 'branch') and sw & c.reads:
            n = max(n, 1)
    elif p.kind == 'mfma':
        if c.kind == 'mfma':
            if p.D & (c.A | c.B):
                n = max(n, D_RAW[p.passes])
            if p.D & c.C:
                if p.D == c.C and p.passes == c.passes:
                    n = max(n, 2 if p.passes == 2 else 0)
                else:
                    n = max(n, D_COV[p.passes])
            elif p.D & c.D:
                n = max(n, D_COV[p.passes])
        elif c.kind in ('valu', 'vmem', 'ds'):
            if p.D & (c.reads | c.writes):
                n = max(n, D_RAW[p.passes])
            if p.C & c.writes:
                n = max(n, C_WAR[p.passes])
    elif p.kind == 'salu':
        if 'm0' in p.writes and c.kind == 'vmem' and c.isdma:
            n = max(n, 1)
    elif p.kind == 'vmem':
        if p.wide and p.sdata & c.writes:
            n = max(n, 2 if c.kind == 'valu' else 1)
    return n


def resolve(prog, verbose=False):
    prog = flatten(prog)
    out = []
    vm, lg = [], []
    stats = {'nop': 0, 'wait': 0}
    saved = None

    def emit_wait(nv, nl):
        parts = []
        if nv is not None:
            parts.append('vmcnt(%d)' % nv)
        if nl is not None:
            parts.append('lgkmcnt(%d)' % nl)
        w = Ins('s_waitcnt ' + ' '.join(parts))
        w.ghost = saved is not None
        out.append(w)
        stats['wait'] += 1

    def cover(need_vm, need_lg):
        nonlocal vm, lg
        nv = nl = None
        if need_vm >= 0:
            nv = len(vm) - 1 - need_vm
            assert nv <= 63, 'vmcnt overflow'
            vm = vm[need_vm + 1:]
        if need_lg >= 0:
            if any(o.kind == 'smem' for o in lg):
                nl = 0
                lg = []
            else:
                nl = len(lg) - 1 - need_lg
                if nl > 15:
                    nl = 15
                    lg = lg[len(lg) - 15:]
                else:
                    lg = lg[need_lg + 1:]
        if nv is not None or nl is not None:
            emit_wait(nv, nl)

    for x in prog:
        if x.kind == 'ghost':
            if x.begin:
                assert saved is None
                saved = (list(vm), list(lg))
            else:
                assert not any(o.ldst for o in vm + lg if o.ghost), 'ghost load not waited'
                vm, lg = saved
                saved = None
            continue
        if saved is not None and isinstance(x, Ins):
            x.ghost = True
        if x.kind == 'reset':
            vm, lg = [], []
            continue
        if x.kind == 'pwait':
            a = b = -1
            for i in x.ins:
                for k, o in enumerate(vm):
                    if o is i:
                        a = max(a, k)
                for k, o in enumerate(lg):
                    if o is i:
                        b = max(b, k)
            if x.vm0 and vm:
                a = len(vm) - 1
            if x.lg0 and lg:
                b = len(lg) - 1
            cover(a, b)
            continue
        if x.kind == 'wait':
            m = re.search(r'vmcnt\((\d+)\)', x.text)
            if m:
                n = int(m.group(1))
                vm = vm[len(vm) - n:] if n and len(vm) > n else ([] if n == 0 else vm)
            m = re.search(r'lgkmcnt\((\d+)\)', x.text)
            if m:
                n = int(m.group(1))
                lg = lg[len(lg) - n:] if n and len(lg) > n else ([] if n == 0 else lg)
            out.append(x)
            continue
        if x.kind in ('label', 'dir'):
            out.append(x)
            continue
        touched = x.reads | x.writes
        a = b = -1
        for k, o in enumerate(vm):
            if o.ldst & touched:
                a = k
        for k, o in enumerate(lg):
            if o.ldst & touched:
                b = k
        cover(a, b)
        if x.kind == 'vmem' and len(vm) >= 63:
            cover(len(vm) - 63, -1)
        need, dist = 0, 0
        for p in reversed(out):
            if p.kind in ('label', 'dir'):
                continue
            if dist >= 20:
                break
            k = need_states(p, x) - dist
            need = max(need, k)
            if x.ghost or not p.ghost:
                dist += p.states
        if need > 0:
            nop = Ins('s_nop %d' % (need - 1))
            nop.ghost = x.ghost
            out.append(nop)
            stats['nop'] += 1
        out.append(x)
        if x.kind == 'vmem':
            vm.append(x)
        elif x.kind in ('ds', 'smem'):
            lg.append(x)
    if verbose:
        print('resolve:', len(out), 'instructions', stats)
    return [o.text for o in out]
```

```python
import sys
from dsl import *

NAME = "recurrent_scan__sliding_block__dense_activation_relu__prompt_kernel"

CS = 32768
OFF_QKV, SZ_QKV = 0, 240 * CS
OFF_H, SZ_H = OFF_QKV + SZ_QKV, 216 * CS
OFF_O, SZ_O = OFF_H + SZ_H, 80 * CS
OFF_WP, SZ_WP = OFF_O + SZ_O, 8 * 74 * 5 * 1024
OFF_M = OFF_WP + SZ_WP
M_STAT = 0
M_CSP = 10 * 2048 * 16
M_F1 = M_CSP + 2 * 10 * 2048 * 8
M_F2 = M_F1 + 1024
M_F3 = M_F2 + 4096
M_STAMP = M_F3 + 4096
SZ_M = M_STAMP + 256 * 4 * 64
OOB = 0x80000000

XR = 81920
MISC = 147456
LDS_BYTES = 163840
KT = 5632
WO_HI, WO_LO = 81920, 61440

sX, sW, sW1, sQKV, sH, sO, sWP, sM, sOUT, sDBG, sR = [24 + 4 * i for i in range(11)]
sw, srb, sj, ss0, sN, sWo, sXo, sW1o, sLW = 68, 69, 70, 71, 72, 73, 74, 75, 76
sT = [3, 22, 23, 77, 78, 79]
sxcd, si = 80, 81
sU = list(range(82, 92))
sSTAMP = list(range(92, 102))


def srd(n):
    return f"s[{n}:{n+3}]"


def vr(b, n=1):
    return f"v{b}" if n == 1 else f"v[{b}:{b+n-1}]"


def ar(b, n=1):
    return f"a{b}" if n == 1 else f"a[{b}:{b+n-1}]"


class Gen:
    def __init__(self, stop=None, stamps=False, cfg=None):
        self.stop, self.stamps = stop, stamps
        self.cfg = dict(flag1_slab=17, gather1_slab=9, f2_tile=4, f3_step=5, code_kb=32)
        self.cfg.update(cfg or {})
        self.P = []
        self.slow = []
        self.nstamp = 0
        self.nlab = 0

    def e(self, *x):
        self.P += flatten(x)

    def lab(self, s):
        self.nlab += 1
        return f"L_{s}_{self.nlab}"

    def stamp(self):
        if not self.stamps:
            return []
        k = self.nstamp
        self.nstamp += 1
        return Is(f"s_memtime s[22:23]\ns_waitcnt lgkmcnt(0)\nv_writelane_b32 v1, s22, {k+1}")

    def retry(self, loads_text, check_text):
        a, b = self.lab("retry"), self.lab("back")
        self.slow += resolve(Is(f"""
{a}:
s_mov_b32 s{sT[5]}, 0x40000
{a}_loop:
s_nop 4
{loads_text}
s_waitcnt vmcnt(0)
{check_text}
s_cbranch_vccz {a}_done
s_sub_u32 s{sT[5]}, s{sT[5]}, 1
s_cmp_lg_u32 s{sT[5]}, 0
s_cbranch_scc1 {a}_loop
{a}_done:
s_nop 4
s_branch {b}
"""))
        return Is(check_text) + Is(f"s_cbranch_vccnz {a}\n{b}:")

    def prologue(self):
        e = self.e
        t0, t1, t2 = sT[0], sT[3], sT[4]
        e(f"""
s_cmp_ge_u32 s2, 256
s_cbranch_scc1 L_end
s_load_dwordx16 s[4:19], s[0:1], 0
s_load_dwordx2 s[20:21], s[0:1], 64
s_memrealtime s[22:23]
{'s_memtime s[86:87]' if self.stamps else ''}
v_lshrrev_b32 v1, 6, v0
v_and_b32 v0, 63, v0
v_readfirstlane_b32 s{sw}, v1
s_and_b32 s{sxcd}, s2, 7
s_lshr_b32 s{si}, s2, 3
s_and_b32 s{t0}, s{sxcd}, 1
s_lshl_b32 s{t0}, s{t0}, 3
s_and_b32 s{t1}, s{si}, 7
s_add_u32 s{srb}, s{t0}, s{t1}
s_lshr_b32 s{t0}, s{sxcd}, 1
s_lshl_b32 s{t0}, s{t0}, 2
s_lshr_b32 s{t1}, s{si}, 3
s_add_u32 s{sj}, s{t0}, s{t1}
s_mul_i32 s{t0}, s{sj}, 3
s_add_u32 s{t0}, s{t0}, s{srb}
s_mul_i32 s{t1}, s{t0}, 205
s_lshr_b32 s{t1}, s{t1}, 11
s_mul_i32 s{t1}, s{t1}, 10
s_sub_u32 s{ss0}, s{t0}, s{t1}
s_mul_i32 s{sWo}, s{ss0}, {64*3840}
s_lshl_b32 s{sXo}, s{ss0}, 7
s_mul_i32 s{sW1o}, s{ss0}, {64*3456}
s_lshl_b32 s{sLW}, s{sw}, 12
""")
        a, b, c, d = 38, 39, 40, 41
        vXa, vXr, vWa, vW1a, vWr = self.vXa, self.vXr, self.vWa, self.vW1a, self.vWr
        e(f"""
s_lshl_b32 s{t0}, s{srb}, 7
s_lshl_b32 s{t1}, s{sw}, 5
s_add_u32 s{sU[0]}, s{t0}, s{t1}
v_lshrrev_b32 v{a}, 3, v0
v_add_u32 v{b}, s{sU[0]}, v{a}
v_mul_u32_u24 v{b}, 0x500, v{b}
v_lshrrev_b32 v{a}, 1, v{a}
v_and_b32 v{c}, 7, v0
v_xor_b32 v{c}, v{c}, v{a}
v_lshl_add_u32 v{vXa}, v{c}, 4, v{b}
v_xor_b32 v{a}, 64, v{vXa}
v_add_u32 v{vXa+1}, 0x2800, v{a}
v_add_u32 v{vXa+2}, 0x5000, v{vXa}
v_add_u32 v{vXa+3}, 0x5000, v{vXa+1}
s_lshl_b32 s{t0}, s{sw}, 4
s_lshl_b32 s{t1}, s{sj}, 8
v_lshrrev_b32 v{a}, 4, v0
v_lshlrev_b32 v{b}, 2, v{a}
v_and_b32 v{c}, 15, v0
v_xor_b32 v{c}, v{c}, v{b}
v_lshlrev_b32 v{c}, 4, v{c}
v_add_u32 v{c}, s{t1}, v{c}
v_add_u32 v{a}, s{t0}, v{a}
s_movk_i32 s{t2}, 3840
v_mad_u32_u24 v{vWa}, v{a}, s{t2}, v{c}
s_movk_i32 s{t2}, 3456
v_mad_u32_u24 v{vW1a}, v{a}, s{t2}, v{c}
""")
        for q in range(1, 4):
            e(f"v_add_u32 v{vWa+q}, {q*4*3840}, v{vWa}")
        e(f"""
s_mov_b32 s{sX}, s4
s_mov_b32 s{sX+1}, s5
s_cmp_lt_u32 s{sj}, 15
s_cselect_b32 s{sX+2}, {2048*1280}, 0
s_mov_b32 s{sX+3}, 0x20000
s_mov_b32 s{sW}, s6
s_mov_b32 s{sW+1}, s7
s_cselect_b32 s{sW+2}, {640*3840}, 0
s_mov_b32 s{sW+3}, 0x20000
s_mov_b32 s{sDBG}, s18
s_mov_b32 s{sDBG+1}, s19
s_mov_b32 s{sDBG+2}, 256
s_mov_b32 s{sDBG+3}, 0x20000
""")
        e(f"s_or_b32 s{t0}, s2, s{sw}\ns_cmp_lg_u32 s{t0}, 0")
        e(ghost("s_cbranch_scc1", f"""
s_or_b32 s22, s22, 1
v_mov_b32 v{a}, s22
v_lshlrev_b32 v{b}, 16, v0
buffer_store_dword v{a}, v{b}, {srd(sDBG)}, 0 offen sc1
""", self.lab("lead")))
        if self.stamps:
            e(f"v_writelane_b32 v1, s22, 0\nv_writelane_b32 v1, s86, 1")
            self.nstamp = 1
        for s in range(3):
            e([list(u) for u in self.dma_w(s)], [list(u) for u in self.dma_x(s)])
        self.nonce_ld = I(f"buffer_load_dword v{self.vNon}, off, {srd(sDBG)}, 0 sc1")
        e(self.nonce_ld)
        e([list(u) for u in self.dma_w(3)], [list(u) for u in self.dma_x(3)], [list(u) for u in self.dma_w(4)])
        npiece = self.cfg['code_kb'] // 8
        e(f"""
s_getpc_b64 s[84:85]
L_pc:
s_and_b32 s{t0}, s{si}, {npiece-1}
s_lshl_b32 s{t0}, s{t0}, 13
v_lshl_add_u32 v{a}, v0, 7, s{t0}
v_min_u32 v{a}, L_last-L_pc-4, v{a}
s_cmp_lg_u32 s{sw}, 0
""")
        e(I("s_cbranch_scc1 L_nopf"), Ghost(True))
        pf = I(f"global_load_dword v{self.vPF}, v{a}, s[84:85]")
        pf.ldst = set()
        e(pf, Ghost(False), I("L_nopf:"))
        for (n, off, sz) in ((sQKV, OFF_QKV, SZ_QKV), (sH, OFF_H, SZ_H), (sO, OFF_O, SZ_O), (sWP, OFF_WP, SZ_WP),
                             (sM, OFF_M, SZ_M)):
            e(f"""
s_add_u32 s{n}, s20, {off}
s_addc_u32 s{n+1}, s21, 0
s_mov_b32 s{n+2}, {sz}
s_mov_b32 s{n+3}, 0x20000
""")
        e(f"""
s_mov_b32 s{sW1}, s12
s_mov_b32 s{sW1+1}, s13
s_cmp_lt_u32 s{sj}, 14
s_cselect_b32 s{sW1+2}, {640*3456}, 0
s_mov_b32 s{sW1+3}, 0x20000
s_mov_b32 s{sOUT}, s16
s_mov_b32 s{sOUT+1}, s17
s_mov_b32 s{sOUT+2}, {2048*1280}
s_mov_b32 s{sOUT+3}, 0x20000
""")
        for q in range(1, 4):
            e(f"v_add_u32 v{vW1a+q}, {q*4*3456}, v{vW1a}")
        e(f"""
v_and_b32 v{self.vRow}, 31, v0
v_lshrrev_b32 v{self.vHH}, 5, v0
v_bfe_u32 v{a}, v0, 1, 3
v_xor_b32 v{a}, v{a}, v{self.vHH}
v_lshlrev_b32 v{a}, 4, v{a}
v_lshl_add_u32 v{a}, v{self.vRow}, 7, v{a}
s_add_u32 s{t0}, s{sLW}, {XR}
v_add_u32 v{vXr}, s{t0}, v{a}
v_xor_b32 v{vXr+1}, 32, v{vXr}
v_xor_b32 v{vXr+2}, 64, v{vXr}
v_xor_b32 v{vXr+3}, 0x60, v{vXr}
v_bfe_u32 v{a}, v0, 2, 2
v_lshl_add_u32 v{b}, v{self.vHH}, 3, v{a}
v_lshlrev_b32 v{b}, 8, v{b}
v_xor_b32 v{a}, s{sw}, v{a}
v_lshl_add_u32 v{b}, v{a}, 6, v{b}
v_bfe_u32 v{a}, v0, 4, 1
v_lshl_add_u32 v{b}, v{a}, 5, v{b}
v_and_b32 v{a}, 3, v0
v_lshl_add_u32 v{vWr}, v{a}, 3, v{b}
v_mov_b32 v{self.vONE}, 0x3f803f80
v_mov_b32 v{self.vONE+1}, 0x3f803f80
""")
        for lt in range(1, 4):
            e(f"v_xor_b32 v{vWr+lt}, {lt*64}, v{vWr}")
        for k in (1, 2):
            for lt in range(4):
                e(f"v_add_u32 v{vWr+4*k+lt}, {k*65536}, v{vWr+lt}")
        e(self.stamp())

    vXa, vXr, vWa, vW1a, vWr = 2, 6, 10, 14, 44
    vNon, vPF, vRow, vHH = 18, 19, 20, 21
    vSQ, vSM, vCSA, vONE = 24, 28, 32, 36
    vMean, vRs, vRs1 = 56, 58, 60
    ACC, WF = 64, 128
    vGS, vGC = 160, 180
    vCB, vPK = 192, 208
    vSt, vCx = 42, 43

    @staticmethod
    def slab_base(gs):
        if gs < 15:
            return (gs % 5) * 16384
        return {15: XR + 2 * 16384, 16: XR + 3 * 16384, 17: XR, 18: XR + 16384, 19: MISC}[gs]

    def adv(self, reg, step):
        return Is(f"s_add_u32 s{reg}, s{reg}, {step}\ns_cmp_eq_u32 s{reg}, {10*step}\ns_cselect_b32 s{reg}, 0, s{reg}")

    def dma_w(self, gs):
        if not hasattr(self, 'Wd'):
            self.Wd = {}
        base = self.slab_base(gs)
        units, hs = [], []
        for q in range(4):
            if gs < 10:
                ld = I(f"buffer_load_dwordx4 v{self.vWa+q}, {srd(sW)}, s{sWo} offen lds")
            else:
                so = sW1o if gs < 15 else sU[1]
                ld = I(f"buffer_load_dwordx4 v{self.vW1a+q}, {srd(sW1)}, s{so} offen lds")
            hs.append(ld)
            pre = [I(f"s_add_u32 m0, s{sLW}, {base+q*1024}")]
            post = [ld]
            if q == 3:
                if gs < 10:
                    post += self.adv(sWo, 64 * 3840)
                elif gs < 15:
                    post += self.adv(sW1o, 64 * 3456)
                else:
                    post += self.adv(sU[1], 64 * 3456)
            units.append((pre, post))
        self.Wd[gs] = hs
        return units

    def dma_x(self, s):
        if not hasattr(self, 'Xd'):
            self.Xd = {}
        units, hs = [], []
        for q in range(4):
            ld = I(f"buffer_load_dwordx4 v{self.vXa+q}, {srd(sX)}, s{sXo} offen lds")
            hs.append(ld)
            post = [ld] + (self.adv(sXo, 128) if q == 3 else [])
            units.append(([I(f"s_add_u32 m0, s{sLW}, {XR+(s&3)*16384+q*1024}")], post))
        self.Xd[s] = hs
        return units

    def w_reads(self, gs, ks, lt, setn):
        off = self.slab_base(gs) + ks * 4096
        k, off = off >> 16, off & 0xffff
        d = self.WF + setn * 16 + lt * 4
        return [I(f"ds_read_b64_tr_b16 {vr(d+2*i,2)}, v{self.vWr+4*k+lt} offset:{off+i*1024}") for i in range(2)]

    def x_read(self, n):
        s, ks = n >> 2, n & 3
        return I(f"ds_read_b128 {ar(4*n,4)}, v{self.vXr+ks} offset:{(s&3)*16384}")

    def cross_half_add(self, v, t):
        return Is(f"v_mov_b32 v{t}, v{v}\nv_permlane32_swap_b32 v{v}, v{t}\nv_add_f32 v{v}, v{v}, v{t}")

    def publish_cs(self, p):
        t0, t1 = sU[2], sU[3]
        c, a = self.vCSA, 38
        L = self.cross_half_add(c, c + 1)
        L += Is(f"""
v_mov_b32 v{c+1}, s{sN}
s_lshl_b32 s{t0}, s{ss0}, 14
s_lshl_b32 s{t1}, s{sj}, 10
s_add_u32 s{t0}, s{t0}, s{t1}
s_lshl_b32 s{t1}, s{sw}, 8
s_add_u32 s{t0}, s{t0}, s{t1}
s_add_u32 s{t0}, s{t0}, {M_CSP+p*163840}
s_cmp_lt_u32 s{srb}, 10
s_cselect_b32 s{t0}, s{t0}, {OOB}
v_lshlrev_b32 v{a}, 31, v{self.vHH}
v_lshl_or_b32 v{a}, v{self.vRow}, 3, v{a}
buffer_store_dwordx2 {vr(c,2)}, v{a}, {srd(sM)}, s{t0} offen sc1
""")
        return L

    def publish_stats(self):
        q, m, a = self.vSQ, self.vSM, 39
        t0, t1, m0_, m1_ = sU[2], sU[3], sU[4], sU[5]
        assert m0_ % 2 == 0
        L = []
        for k, pat in ((1, 0x22222222), (2, 0x44444444), (3, 0x88888888)):
            L += Is(f"s_mov_b32 s{m0_}, {pat}\ns_mov_b32 s{m1_}, {pat}\nv_cndmask_b32 v{q}, v{q}, v{q+k}, s[{m0_}:{m1_}]")
        L += self.cross_half_add(q, q + 1)
        L += self.cross_half_add(m, m + 1)
        L += Is(f"""
v_mov_b32 v{m+1}, v{q}
v_mov_b32 v{m+2}, s{sN}
v_mov_b32 v{m+3}, s{sN}
s_lshl_b32 s{t0}, s{ss0}, 15
s_lshl_b32 s{t1}, s{sU[0]}, 4
s_add_u32 s{t0}, s{t0}, s{t1}
s_cmp_lt_u32 s{sj}, 10
s_cselect_b32 s{t0}, s{t0}, {OOB}
v_lshlrev_b32 v{a}, 31, v{self.vHH}
v_lshl_or_b32 v{a}, v{self.vRow}, 4, v{a}
buffer_store_dwordx4 {vr(m,4)}, v{a}, {srd(sM)}, s{t0} offen sc1
""")
        return L

    def get_nonce(self):
        chk = f"v_cmp_eq_u32 vcc, 0, v{self.vNon}"
        L = self.retry(self.nonce_ld.text, chk)
        L += Is(f"v_readfirstlane_b32 s{sN}, v{self.vNon}")
        return L

    def gather_cs_text(self, p):
        t0 = sU[2]
        txt = f"s_mov_b32 s{t0}, {M_CSP+p*163840}\n"
        for u in range(5):
            txt += f"buffer_load_dwordx2 {vr(self.vGC+2*u,2)}, v{self.vGCa}, {srd(sM)}, s{t0} offen sc1\n"
            if u < 4:
                txt += f"s_add_u32 s{t0}, s{t0}, 16384\n"
        return txt

    def gather_st_text(self):
        t0 = sU[3]
        txt = f"s_mov_b32 s{t0}, {M_STAT}\n"
        for u in range(5):
            txt += f"buffer_load_dwordx4 {vr(self.vGS+4*u,4)}, v{self.vGSa}, {srd(sM)}, s{t0} offen sc1\n"
            if u < 4:
                txt += f"s_add_u32 s{t0}, s{t0}, 32768\n"
        return txt

    vGCa, vGSa = 62, 63

    def gather_addr(self):
        t0, t1 = sU[2], sU[3]
        return Is(f"""
s_lshl_b32 s{t0}, s{sj}, 10
s_lshl_b32 s{t1}, s{sw}, 8
s_add_u32 s{t0}, s{t0}, s{t1}
v_lshl_add_u32 v{self.vGCa}, v{self.vRow}, 3, s{t0}
s_mov_b32 s{t1}, {5*16384}
v_mad_u32_u24 v{self.vGCa}, v{self.vHH}, s{t1}, v{self.vGCa}
s_lshl_b32 s{t0}, s{sU[0]}, 4
v_lshl_add_u32 v{self.vGSa}, v{self.vRow}, 4, s{t0}
s_mov_b32 s{t1}, {5*32768}
v_mad_u32_u24 v{self.vGSa}, v{self.vHH}, s{t1}, v{self.vGSa}
v_lshl_add_u32 v{self.vSt}, v{self.vRow}, 4, s{t0}
v_lshl_add_u32 v{self.vSt}, v{self.vHH}, 15, v{self.vSt}
""")

    def tag_check(self, regs, a=38, b=39):
        txt = f"v_xor_b32 v{a}, s{sN}, v{regs[0]}\n"
        for r in regs[1:]:
            txt += f"v_xor_b32 v{b}, s{sN}, v{r}\nv_or_b32 v{a}, v{a}, v{b}\n"
        txt += f"v_cmp_ne_u32 vcc, 0, v{a}"
        return txt

    def relayout_addr_dma(self):
        g, ks, s10, t0, t1, t2 = sU[6], sU[7], sU[8], sU[2], sU[3], sU[4]
        a, b = 38, 39
        U = []
        pre = Is(f"""
s_lshl_b32 s{g}, s2, 2
s_add_u32 s{g}, s{g}, s{sw}
s_mul_i32 s{ks}, s{g}, 6554
s_lshr_b32 s{ks}, s{ks}, 16
s_mul_i32 s{t0}, s{ks}, 10
s_sub_u32 s{s10}, s{g}, s{t0}
s_mov_b32 s{t1}, {640*1280}
s_cmp_lt_u32 s{ks}, 54
s_cselect_b32 s{sR}, s14, s8
s_cselect_b32 s{sR+1}, s15, s9
s_cselect_b32 s{sR+2}, {1728*1280}, s{t1}
s_mov_b32 s{sR+3}, 0x20000
s_cmp_lt_u32 s{ks}, 74
s_cselect_b32 s{sR+2}, s{sR+2}, 0
v_lshrrev_b32 v{self.vR8}, 3, v0
v_and_b32 v{a}, 7, v0
v_lshlrev_b32 v{a}, 4, v{a}
s_lshl_b32 s{t0}, s{s10}, 7
v_add_u32 v{a}, s{t0}, v{a}
s_movk_i32 s{t0}, 1280
v_mad_u32_u24 v{self.vRa}, v{self.vR8}, s{t0}, v{a}
v_lshrrev_b32 v{self.vR8}, 2, v{self.vR8}
""")
        U.append(self.units(pre))
        self.Rd = []
        for q in range(4):
            L = Is(f"""
s_sub_u32 s{t0}, s{ks}, 54
s_lshl_b32 s{t0}, s{t0}, 2
s_add_u32 s{t0}, s{t0}, {q}
s_and_b32 s{t0}, s{t0}, 0x7f
s_mul_i32 s{t1}, s{t0}, 205
s_lshr_b32 s{t1}, s{t1}, 10
s_mul_i32 s{t2}, s{t1}, 5
s_sub_u32 s{t0}, s{t0}, s{t2}
s_mul_i32 s{t1}, s{t1}, 40
s_mul_i32 s{t2}, s{t0}, 5
s_lshr_b32 s{t2}, 0x010e5100, s{t2}
s_and_b32 s{t2}, s{t2}, 31
s_add_u32 s{t1}, s{t1}, s{t2}
s_cmp_eq_u32 s{t0}, 4
s_cselect_b32 s{t0}, {16*1280}, 0
s_lshl_b32 s{t2}, s{ks}, 5
s_add_u32 s{t2}, s{t2}, {8*q}
s_cmp_lt_u32 s{ks}, 54
s_cselect_b32 s{t1}, s{t2}, s{t1}
s_cselect_b32 s{t0}, 0, s{t0}
s_mul_i32 s{t1}, s{t1}, 1280
v_mad_u32_u24 v{b}, v{self.vR8}, s{t0}, v{self.vRa}
s_add_u32 m0, s{sLW}, {MISC+q*1024}
""")
            ld = I(f"buffer_load_dwordx4 v{b}, {srd(sR)}, s{t1} offen lds")
            self.Rd.append(ld)
            U.append(self.units(L + [ld]))
        return U

    vR8, vRa = 22, 23

    def relayout_store(self):
        ks, s10, t0, t1, t2 = sU[7], sU[8], sU[2], sU[3], sU[4]
        a, b, d = 38, 39, self.vCB
        L = Is(f"""
v_lshrrev_b32 v{a}, 4, v0
v_bfe_u32 v{b}, v0, 2, 2
v_lshl_add_u32 v{a}, v{a}, 3, v{b}
v_lshlrev_b32 v{a}, 7, v{a}
v_and_b32 v{b}, 3, v0
v_lshl_add_u32 v{a}, v{b}, 3, v{a}
s_add_u32 s{t0}, s{sLW}, {MISC}
v_add_u32 v{a}, s{t0}, v{a}
v_lshlrev_b32 v{b}, 4, v0
""")
        L.append(Wait(*self.Rd))
        for t in range(4):
            for i in range(2):
                L.append(I(f"ds_read_b64_tr_b16 {vr(d+4*t+2*i,2)}, v{a} offset:{i*512+t*32}"))
        hs = []
        for t in range(4):
            L += Is(f"""
s_lshl_b32 s{t0}, s{s10}, 2
s_add_u32 s{t0}, s{t0}, {t}
s_mul_i32 s{t1}, s{t0}, 205
s_lshr_b32 s{t1}, s{t1}, 10
s_mul_i32 s{t2}, s{t1}, 5
s_sub_u32 s{t0}, s{t0}, s{t2}
s_mul_i32 s{t1}, s{t1}, 74
s_add_u32 s{t1}, s{t1}, s{ks}
s_mul_i32 s{t1}, s{t1}, 5
s_add_u32 s{t1}, s{t1}, s{t0}
s_lshl_b32 s{t1}, s{t1}, 10
s_cmp_lt_u32 s{ks}, 74
s_cselect_b32 s{t1}, s{t1}, {OOB}
""")
            st = I(f"buffer_store_dwordx4 {vr(d+4*t,4)}, v{b}, {srd(sWP)}, s{t1} offen sc1")
            hs.append(st)
            L.append(st)
        return L, hs

    def gemm_pass(self, p, fills, barrier_extra):
        e = self.e
        g0 = 10 * p
        queue = list(fills.get(0, []))
        for n in range(40):
            s, ks = n >> 2, n & 3
            for lt in range(4):
                acc = vr(self.ACC + 16 * lt, 16)
                wf = self.WF + (n & 1) * 16 + lt * 4
                e(I(f"v_mfma_f32_32x32x16_bf16 {acc}, {vr(wf,4)}, {ar(4*n,4)}, {'0' if n == 0 else acc}"))
                if n < 4:
                    small = []
                    if p == 0 and lt < 2:
                        x = ar(4 * n + 2 * lt, 2)
                        c = '0' if (n == 0 and lt == 0) else None
                        small.append(f"v_mfma_f32_4x4x4bf16_1k {vr(self.vSQ,4)}, {x}, {x}, {c or vr(self.vSQ,4)}")
                        small.append(f"v_mfma_f32_4x4x4bf16_1k {vr(self.vSM,4)}, {vr(self.vONE,2)}, {x}, {c or vr(self.vSM,4)}")
                    if lt >= 2:
                        wf0 = self.WF + (n & 1) * 16 + 2 * (lt - 2)
                        c = '0' if (n == 0 and lt == 2) else vr(self.vCSA, 4)
                        small.append(f"v_mfma_f32_4x4x4bf16_1k {vr(self.vCSA,4)}, {vr(self.vONE,2)}, {vr(wf0,2)}, {c}")
                    e("\n".join(small) if small else [])
                if ks == 3 and lt == 0 and s < 9:
                    for (pre, post) in queue:
                        e(pre, post)
                    bef, aft = barrier_extra.get(s + 1, ([], []))
                    w = list(self.Wd[g0 + s + 1]) + (list(self.Xd[s + 1]) if p == 0 else [])
                    e(bef, Wait(*w), I("s_barrier"), aft)
                    queue = list(fills.get(s + 1, []))
                g = n * 4 + lt
                left = 12 - g if g < 12 else 160 - g if g >= 140 else 16 - (g - 12) % 16
                take = -(-len(queue) // left) if queue else 0
                units, queue = queue[:take], queue[take:]
                first_pre = units[0][0] if units else []
                e(first_pre)
                if n < 39:
                    n1 = n + 1
                    e(self.w_reads(g0 + (n1 >> 2), n1 & 3, lt, n1 & 1))
                    if p == 0 and lt == 1:
                        e(self.x_read(n1))
                for k, (pre, post) in enumerate(units):
                    e(pre if k else [], post)
        for (pre, post) in queue:
            e(pre, post)

    def epilogue(self, p, csx):
        e = self.e
        t0, t1 = sU[2], sU[3]
        rs = self.vRs1 if p == 0 else self.vRs
        dst = sQKV if p == 0 else sH
        hs = []
        e(f"""
s_lshl_b32 s{t0}, s{sw}, 7
s_add_u32 s{t0}, s{t0}, {csx}
v_lshl_add_u32 v{self.vCx}, v{self.vHH}, 4, s{t0}
""")

        def cs_reads(lt):
            L = []
            if lt:
                L.append(I(f"v_xor_b32 v38, {lt*128}, v{self.vCx}"))
            for i in range(4):
                L.append(I(f"ds_read_b128 {vr(self.vCBx(lt)+4*i,4)}, v{38 if lt else self.vCx} offset:{i*32}"))
            return L
        e(cs_reads(0))
        for lt in range(4):
            if lt < 3:
                e(cs_reads(lt + 1))
            acc, cb, pk = self.ACC + 16 * lt, self.vCBx(lt), (self.vPK, 248)[lt & 1]
            for r in range(0, 16, 2):
                e(f"v_pk_fma_f32 {vr(acc+r,2)}, {vr(cb+r,2)}, {vr(self.vMean,2)}, {vr(acc+r,2)} op_sel_hi:[1,0,1]")
            for r in range(0, 16, 2):
                e(f"v_pk_mul_f32 {vr(acc+r,2)}, {vr(acc+r,2)}, {vr(rs,2)} op_sel_hi:[1,0]")
            for r in range(0, 16, 2):
                e(f"v_cvt_pk_bf16_f32 v{pk+r//2}, v{acc+r}, v{acc+r+1}")
            if p == 1:
                for r in range(8):
                    e(f"v_pk_max_i16 v{pk+r}, v{pk+r}, 0")
            e(f"""
s_xor_b32 s{t0}, s{sw}, {lt}
s_lshl_b32 s{t1}, s{sj}, 2
s_add_u32 s{t0}, s{t0}, s{t1}
s_lshl_b32 s{t0}, s{t0}, 17
s_add_u32 s{t1}, s{t0}, {2*CS}
""")
            for h in range(2):
                e(f"v_permlane32_swap_b32 v{pk+4*h}, v{pk+4*h+2}\nv_permlane32_swap_b32 v{pk+4*h+1}, v{pk+4*h+3}")
            for h in range(2):
                st = I(f"buffer_store_dwordx4 {vr(pk+4*h,4)}, v{self.vSt}, {srd(dst)}, s{(t0, t1)[h]} offen sc1")
                hs.append(st)
                e(st)
        return hs

    def vCBx(self, lt):
        return (self.vCB, self.vGS)[lt & 1]

    def cs_finish(self, p, csx):
        g = self.vGC
        L = Is(f"""
v_add_f32 v{g}, v{g}, v{g+2}
v_add_f32 v{g+4}, v{g+4}, v{g+6}
v_add_f32 v{g}, v{g}, v{g+8}
v_add_f32 v{g}, v{g}, v{g+4}
""") + self.cross_half_add(g, g + 1)
        L += Is(f"""
s_lshl_b32 s{sU[2]}, s{sw}, 7
s_add_u32 s{sU[2]}, s{sU[2]}, {csx}
v_lshl_add_u32 v38, v{self.vRow}, 2, s{sU[2]}
""")
        wr = I(f"ds_write_b32 v38, v{g}")
        return L + [wr], wr

    def rnd(self, v):
        return f"v_cvt_pk_bf16_f32 v{v}, v{v}, v{v}\nv_and_b32 v{v}, 0xffff0000, v{v}\n"

    def stats_finish(self):
        g = self.vGS
        m, rs = self.vMean, self.vRs
        L = []
        for k in range(2):
            L += Is(f"""
v_add_f32 v{g+k}, v{g+k}, v{g+4+k}
v_add_f32 v{g+8+k}, v{g+8+k}, v{g+12+k}
v_add_f32 v{g+k}, v{g+k}, v{g+16+k}
v_add_f32 v{g+k}, v{g+k}, v{g+8+k}
""")
        L += self.cross_half_add(g, g + 4) + self.cross_half_add(g + 1, g + 5)
        import struct
        f = lambda x: hex(struct.unpack('<I', struct.pack('<f', x))[0])
        qs = 20 ** -0.5 * 1.4426950408889634
        L += Is(f"""
v_mul_f32 v{m}, {f(1/640)}, v{g}
v_mul_f32 v{rs}, {f(1/640)}, v{g+1}
v_fma_f32 v{rs}, -v{m}, v{m}, v{rs}
v_max_f32 v{rs}, 0, v{rs}
{self.rnd(m)}
{self.rnd(rs)}
v_add_f32 v{rs}, {f(1e-5)}, v{rs}
{self.rnd(rs)}
v_sqrt_f32 v{rs}, v{rs}
v_sub_f32 v{m}, 0, v{m}
{self.rnd(rs)}
v_rcp_f32 v{rs}, v{rs}
s_cmp_lt_u32 s{sj}, 5
s_cselect_b32 s{sU[2]}, {f(qs)}, 1.0
v_mul_f32 v{self.vRs1}, s{sU[2]}, v{rs}
""")
        return L

    @staticmethod
    def units(L):
        L = flatten(L)
        start = list(range(len(L)))
        last = {}
        for k, x in enumerate(L):
            if isinstance(x, Ins):
                for r in ('scc', 'm0'):
                    if r in x.reads and r in last:
                        for q in range(last[r] + 1, k + 1):
                            start[q] = -1
                for r in ('scc', 'm0'):
                    if r in x.writes:
                        last[r] = k
        out = []
        for k, x in enumerate(L):
            if start[k] == -1:
                out[-1][1].append(x)
            else:
                out.append(([], [x]))
        return out

    @staticmethod
    def merge(*qs):
        qs = [list(q) for q in qs if q]
        out, tot = [], sum(len(q) for q in qs)
        pos = [0] * len(qs)
        for k in range(tot):
            best = min(range(len(qs)), key=lambda i: (pos[i] + 0.5) / len(qs[i]) if pos[i] < len(qs[i]) else 9)
            out.append(qs[best][pos[best]])
            pos[best] += 1
        return out

    def phase1(self):
        e = self.e
        cfg = self.cfg
        CSX0, CSX1 = XR + 16384, XR + 2 * 16384
        e(Wait(*self.Wd[0], *self.Xd[0]), I("s_barrier"))
        e(self.x_read(0))
        for lt in range(4):
            e(self.w_reads(0, 0, lt, 0))
        e(self.stamp())
        fills = {}
        rl = self.relayout_addr_dma()
        for s in range(10):
            q = []
            if s >= 2:
                q.append(self.dma_w(s + 3))
            if 1 <= s <= 6:
                q.append(self.dma_x(s + 3))
            if s >= 7:
                u = self.dma_w(s + 8)
                if s == 7:
                    u = self.units(f"""
s_add_u32 s{sU[1]}, s{ss0}, 5
s_cmp_ge_u32 s{sU[1]}, 10
s_cselect_b32 s{sU[9]}, 10, 0
s_sub_u32 s{sU[1]}, s{sU[1]}, s{sU[9]}
s_mul_i32 s{sU[1]}, s{sU[1]}, {64*3456}""") + u
                q.append(u)
            m = self.merge(*q)
            if s == 2:
                m = self.merge(m, self.units([self.get_nonce(), self.publish_stats(), self.publish_cs(0)]))
            if s == 3:
                m = self.merge(m, self.units(self.gather_addr()) + rl[0])
            if s in (4, 5):
                m = self.merge(m, rl[2 * s - 7] + rl[2 * s - 6])
            if s == cfg['gather1_slab']:
                m = m + self.units(self.gather_st_text() + self.gather_cs_text(0))
            fills[s] = m
        self.gemm_pass(0, fills, {})
        e(self.stamp())
        chk = self.tag_check([self.vGS + 4 * u + 2 for u in range(5)] + [self.vGC + 2 * u + 1 for u in range(5)])
        e(self.retry(self.gather_st_text() + self.gather_cs_text(0), chk))
        L, wr = self.cs_finish(0, CSX0)
        e(L, self.stats_finish(), Wait(wr, *self.Wd[10]), I("s_barrier"))
        for gs in (13, 14):
            e([list(u) for u in self.dma_w(gs)])
        st0 = self.epilogue(0, CSX0)
        L, hs = self.relayout_store()
        e(L)
        st0 += hs
        e(self.stamp())
        if self.stop == 'p1a':
            return
        for lt in range(4):
            e(self.w_reads(10, 0, lt, 0))
        fills, bx = {}, {}
        fills[1] = self.dma_w(18) + self.dma_w(19)
        fills[2] = self.units(self.publish_cs(1))
        su = self.units(self.attn_setup())
        k = (len(su) + 2) // 3
        for s in range(3):
            fills[3 + s] = su[s * k:(s + 1) * k]
        fills[7] = self.units(self.attn_valid_blocks())
        fs = cfg['flag1_slab'] - 10
        bx[fs] = ([Wait(*st0)], [I(f"s_cmp_lg_u32 s{sw}, 0")] + ghost("s_cbranch_scc1", f"""
v_mov_b32 v26, s{sN}
v_lshlrev_b32 v27, 24, v0
s_lshl_b32 s{sU[2]}, s2, 2
s_add_u32 s{sU[2]}, s{sU[2]}, {M_F1}
buffer_store_dword v26, v27, {srd(sM)}, s{sU[2]} offen sc1
""", self.lab("f1")))
        f1 = f"s_mov_b32 s{sU[3]}, {M_F1}\nbuffer_load_dwordx4 {vr(self.vGS,4)}, v{self.vL16}, {srd(sM)}, s{sU[3]} offen sc1\n"
        fills[9] = self.units(self.gather_cs_text(1) + f1)
        self.gemm_pass(1, fills, bx)
        e(self.stamp())
        e(self.retry(f1, self.tag_check([self.vGS + u for u in range(4)])))
        self.attn_loads()
        e(self.retry(self.gather_cs_text(1), self.tag_check([self.vGC + 2 * u + 1 for u in range(5)])))
        L, wr = self.cs_finish(1, CSX1)
        e(L, Wait(wr), I("s_barrier"))
        self.stH = self.epilogue(1, CSX1)
        e(self.stamp())

    MASK0, MASK8 = 216, 232
    vL16 = 57
    vKa, vK2, vV = 2, 4, 5
    vD = 10
    vQa = 9
    QA, QB, Q2R = 128, 132, 136
    shp, srA = 82, 91

    def attn_setup(self):
        a, b, c = 38, 39, 40
        H, R = self.vHH, self.vRow
        t0, t1 = sU[4], sU[5]
        hp, rA = sU[6], sU[7]
        self.hp, self.rA = hp, rA
        L = Is(f"""
v_lshlrev_b32 v{self.vL16}, 4, v0
s_lshr_b32 s{t0}, s{si}, 4
s_lshl_b32 s{hp}, s{sxcd}, 1
s_add_u32 s{hp}, s{hp}, s{t0}
s_and_b32 s{rA}, s{si}, 15
v_lshlrev_b32 v{a}, 2, v{H}
v_sub_u32 v{a}, v{R}, v{a}
v_mov_b32 v{b}, 0xf149f2ca
""")
        for r in range(16):
            kb = (r & 3) + 8 * (r >> 2)
            L += Is(f"""
v_cmp_gt_i32 s[{t0}:{t1}], {kb}, v{a}
v_cndmask_b32 v{self.MASK0+r}, v{b}, 0, s[{t0}:{t1}]
v_cndmask_b32 v{self.MASK8+r}, 0, v{b}, s[{t0}:{t1}]
""")
        D = self.vD
        L += Is(f"""
v_lshlrev_b32 v{a}, 4, v{R}
v_lshl_add_u32 v{D}, v{H}, 15, v{a}
s_mov_b32 s{t0}, {76*CS}
v_mad_u32_u24 v{D+1}, v{H}, s{t0}, v{a}
v_add_u32 v{b}, 1, v{H}
v_lshlrev_b32 v{b}, 6, v{b}
v_xor_b32 v{D+2}, v{D}, v{b}
v_sub_u32 v{b}, 1, v{H}
v_mul_u32_u24 v{b}, 0xc0, v{b}
v_xor_b32 v{D+3}, v{D}, v{b}
s_mul_i32 s{t0}, s{sw}, {KT}
v_add_u32 v{a}, s{t0}, v{a}
v_lshl_add_u32 v{self.vKa}, v{H}, 9, v{a}
v_add_u32 v{self.vKa+1}, {3*512}, v{self.vKa}
v_lshl_add_u32 v{self.vK2}, v{H}, 12, v{a}
v_add_u32 v{self.vK2}, 0x400, v{self.vK2}
s_lshl_b32 s{t1}, s{rA}, 11
s_lshl_b32 s{sU[8]}, s{sw}, 9
s_add_u32 s{t1}, s{t1}, s{sU[8]}
v_add_u32 v{self.vQa}, s{t1}, v{D}
""")
        for hd in range(2):
            blk, hb, sz = [], [], []
            for dq in range(8):
                if dq < 5:
                    el = 20 * hd + 4 * dq
                    ch = el >> 3
                    blk.append(5 + ch)
                    hb.append((el >> 2) & 1)
                    sz.append((0, 1, 2, 3, 0)[ch])
                else:
                    blk.append(10)
                    hb.append(1)
                    sz.append(3 if hd == 0 else 1)
            tb = sum(blk[d] << (4 * d) for d in range(8))
            th = sum((hb[d] | (sz[d] << 1)) << (4 * d) for d in range(8))
            v = self.vV + 2 * hd
            L += Is(f"""
v_bfe_u32 v{a}, v0, 4, 1
v_and_b32 v{b}, 3, v0
v_lshl_add_u32 v{a}, v{a}, 2, v{b}
v_lshlrev_b32 v{a}, 2, v{a}
v_lshrrev_b32 v{b}, v{a}, v{self.const_v(tb, L, c)}
v_and_b32 v{b}, 15, v{b}
v_lshlrev_b32 v{v}, 9, v{b}
v_lshrrev_b32 v{b}, v{a}, v{self.const_v(th, L, c+1)}
v_and_b32 v{a}, 1, v{b}
v_lshl_add_u32 v{v}, v{a}, 3, v{v}
v_bfe_u32 v{b}, v{b}, 1, 2
v_xor_b32 v{b}, v{b}, v{H}
v_lshl_add_u32 v{v}, v{b}, 6, v{v}
v_bfe_u32 v{b}, v0, 2, 2
v_lshl_add_u32 v{v}, v{b}, 4, v{v}
v_xor_b32 v{v+1}, 0x80, v{v}
v_add_u32 v{v}, s{t0}, v{v}
v_add_u32 v{v+1}, s{t0}, v{v+1}
""")
        return L

    def const_v(self, val, L, reg):
        L.append(I(f"v_mov_b32 v{reg}, {hex(val)}"))
        return reg

    def attn_valid_blocks(self):
        d, a = self.vGS + 4, 38
        t0, t1 = sU[4], sU[5]
        L = Is(f"""
v_mov_b32 v{d+1}, 0x3f80
v_mov_b32 v{d+2}, 0x3f803f80
v_mov_b32 v{d+3}, 0x3f803f80
s_mul_i32 s{t0}, s{sw}, {3*KT}
s_add_u32 s{t0}, s{t0}, 5120
v_lshl_add_u32 v{a}, v{self.vRow}, 4, s{t0}
s_lshl_b32 s{t0}, s{self.rA}, 2
s_mul_i32 s{t1}, s{sw}, 3
s_add_u32 s{sU[8]}, s{t0}, s{t1}
""")
        self.validW = []
        for T in range(3):
            L += Is(f"""
s_cmp_ge_u32 s{sU[8]}, {8-T}
s_cselect_b32 s{t0}, 0x3f800000, 0x3f80f149
v_mov_b32 v{d}, s{t0}
""")
            wr = I(f"ds_write_b128 v{a}, {vr(d,4)} offset:{T*KT}")
            self.validW.append(wr)
            L.append(wr)
        return L

    def attn_loads(self):
        e = self.e
        hp = self.hp
        rowb = [sU[2], sU[3], sU[4]]
        t0, kb = sU[5], sU[9]
        for T in range(3):
            e(f"""
s_add_u32 s{t0}, s{sU[8]}, {T}
s_sub_u32 s{rowb[T]}, s{t0}, 8
s_lshl_b32 s{rowb[T]}, s{rowb[T]}, 9
s_cmp_ge_u32 s{t0}, 8
s_cselect_b32 s{rowb[T]}, s{rowb[T]}, {OOB}
""")
        e(f"s_mul_i32 s{kb}, s{hp}, {5*CS}\ns_mul_i32 s{sU[1]}, s{sw}, {3*KT}")
        e(f"""
buffer_load_dwordx4 {vr(self.QA,4)}, v{self.vQa}, {srd(sQKV)}, s{kb} offen sc1
s_add_u32 s{t0}, s{kb}, {3*CS}
buffer_load_dwordx4 {vr(self.QB,4)}, v{self.vQa}, {srd(sQKV)}, s{t0} offen sc1
s_add_u32 s{t0}, s{kb}, {2*CS}
buffer_load_dwordx4 {vr(self.Q2R,4)}, v{self.vQa}, {srd(sQKV)}, s{t0} offen sc1
""")
        self.Kd, self.Vd = [], []
        pairs = [(80, 0), (82, 0), (84, 1), (161, 2), (163, 3)]
        for group in (pairs[:3], pairs[3:]):
            for T in range(3):
                for (ch, dv) in group:
                    P = pairs.index((ch, dv))
                    ld = I(f"buffer_load_dwordx4 v{self.vD+dv}, {srd(sQKV)}, s{t0} offen sc1 lds")
                    e(f"s_add_u32 s{t0}, s{kb}, {ch*CS}\ns_add_u32 m0, s{sU[1]}, {T*KT+P*1024}\ns_add_u32 s{t0}, s{t0}, s{rowb[T]}", ld)
                    (self.Kd if P < 3 else self.Vd).append(ld)

    S0, OACC, PP, KF, VF, Q2 = 64, 96, 112, 140, 156, 172
    vMx, OPK = 176, 180
    AR = 192 - 0

    def attention(self):
        e = self.e
        cfg = self.cfg
        pre = self.p3_setup()
        e(pre)
        e(Wait(*self.Kd, *self.validW), I("s_barrier"))
        e(self.stamp())
        pf = self.p3_prefetch_units()
        npf = len(pf)
        slots = 2 * 9 * 5
        done = 0
        slot = 0

        def take():
            nonlocal done, slot
            slot += 1
            want = min(npf, -(-npf * slot // slots))
            u = pf[done:want]
            done = want
            return [list(x) for x in u]

        H = self.vHH
        mx, t1, t2 = self.vMx, self.vMx + 1, self.vMx + 2
        hm = sU[4]
        assert hm % 2 == 0
        e(f"s_mov_b32 s{hm}, 0\ns_mov_b32 s{hm+1}, -1")
        for hd in range(2):
            Q = (self.QA, self.QB)[hd]
            Q2 = self.Q2
            ka = self.vKa + hd

            def kreads(T):
                d = self.KF + 8 * (T & 1)
                return Is(f"ds_read_b128 {vr(d,4)}, v{ka} offset:{T*KT}\nds_read_b128 {vr(d+4,4)}, v{self.vK2} offset:{T*KT}")

            def qk(T):
                d, s = self.KF + 8 * (T & 1), vr(self.S0 + 16 * (T & 1), 16)
                c = vr(self.MASK0, 16) if T == 0 else vr(self.MASK8, 16) if T == 8 else '0'
                return [I(f"v_mfma_f32_32x32x16_bf16 {s}, {vr(d,4)}, {vr(Q,4)}, {c}"),
                        I(f"v_mfma_f32_32x32x16_bf16 {s}, {vr(d+4,4)}, {vr(Q2,4)}, {s}")]

            def vreads(T):
                d = self.VF + 8 * (T & 1)
                return [I(f"ds_read_b64_tr_b16 {vr(d+4*u+2*i,2)}, v{self.vV+2*hd+i} offset:{T*KT+u*256}")
                        for u in range(2) for i in range(2)]
            e(kreads(0), kreads(1))
            lo, z = (0, 2) if hd == 0 else (2, 0)
            R2 = self.Q2R
            if hd == 0:
                e(f"""
v_mov_b32 v{t1}, 0x3f80
v_cndmask_b32 v{Q2}, v{R2}, v{t1}, s[{hm}:{hm+1}]
v_cndmask_b32 v{Q2+1}, v{R2+1}, 0, s[{hm}:{hm+1}]
v_mov_b32 v{Q2+2}, 0
v_mov_b32 v{Q2+3}, 0
""")
            else:
                e(f"""
v_mov_b32 v{t1}, 0x3f80
v_cndmask_b32 v{Q2}, 0, v{t1}, s[{hm}:{hm+1}]
v_mov_b32 v{Q2+1}, 0
v_cndmask_b32 v{Q2+2}, v{R2+2}, 0, s[{hm}:{hm+1}]
v_cndmask_b32 v{Q2+3}, v{R2+3}, 0, s[{hm}:{hm+1}]
""")
            e(qk(0))
            for T in range(9):
                s = self.S0 + 16 * (T & 1)
                m = []
                if T == 0:
                    m.append(I(f"v_max3_f32 v{mx}, v{s}, v{s+1}, v{s+2}"))
                    m.append(I(f"v_max3_f32 v{t2}, v{s+3}, v{s+4}, v{s+5}"))
                    rest = list(range(6, 16))
                else:
                    rest = list(range(16))
                for k in range(0, len(rest), 2):
                    d = mx if (k // 2) % 2 == 0 else t2
                    m.append(I(f"v_max3_f32 v{d}, v{d}, v{s+rest[k]}, v{s+rest[k+1]}"))
                if T < 8:
                    q = qk(T + 1)
                    kr = kreads(T + 2) if T + 2 <= 8 else kreads(T + 2 - 9 + 1 - 1) if False else []
                    e(q[0], take(), q[1], kr, m)
                else:
                    e(kreads(0), kreads(1), take(), m)
            e(f"""
v_max_f32 v{mx}, v{mx}, v{t2}
v_mov_b32 v{t2}, v{mx}
v_permlane32_swap_b32 v{mx}, v{t2}
v_max_f32 v{mx}, v{mx}, v{t2}
v_sub_f32 v{mx}, 0, v{mx}
v_cvt_pk_bf16_f32 v{t1}, 1.0, v{mx}
v_and_b32 v{t2}, 0xffff0000, v{t1}
v_sub_f32 v{mx}, v{mx}, v{t2}
v_cvt_pk_bf16_f32 v{t2}, v{mx}, 0
v_cndmask_b32 v{Q2}, v{Q2}, v{t1}, s[{hm}:{hm+1}]
v_cndmask_b32 v{Q2+1}, v{Q2+1}, v{t2}, s[{hm}:{hm+1}]
""")
            if hd == 0:
                e(Wait(*self.Vd), I("s_barrier"))
            e(vreads(0), qk(0))
            O = vr(self.OACC, 16)
            for T in range(9):
                s, p, v = self.S0 + 16 * (T & 1), self.PP + 8 * (T & 1), self.VF + 8 * (T & 1)
                ex = [I(f"v_exp_f32 v{s+r}, v{s+r}") for r in range(16)]
                cv = [I(f"v_cvt_pk_bf16_f32 v{p+r}, v{s+2*r}, v{s+2*r+1}") for r in range(8)]
                pv = [I(f"v_mfma_f32_32x32x16_bf16 {O}, {vr(v+4*u,4)}, {vr(p+4*u,4)}, {'0' if (T == 0 and u == 0) else O}")
                      for u in range(2)]
                q = qk(T + 1) if T < 8 else [[], []]
                kr = kreads(T + 2) if T + 2 <= 8 else []
                vn = vreads(T + 1) if T < 8 else []
                extra = []
                if hd == 0 and T == cfg['f2_tile']:
                    extra = self.wave_flag(self.stH, M_F2, srb, sj)
                if hd == 1 and T == 2:
                    extra = Is(self.f2_text())
                e(q[0], take(), ex[0:4], q[1], kr, ex[4:8], cv[0:2], take(), ex[8:10], cv[2:4], ex[10:12], pv[0],
                  take(), vn[0:2], ex[12:16], cv[4:6], vn[2:4], extra, take(), cv[6:8], pv[1])
            if hd == 1:
                e(self.retry(self.f2_text(), self.tag_check([self.vF])))
                e(self.p3_first_a())
            o, pk = self.OACC, self.OPK + (0, 4)[hd]
            last = self.OPK + 8 + 2 * hd
            e(f"""
v_mov_b32 v{t1}, v{o+8}
v_mov_b32 v{t2}, v{o+8}
v_permlane32_swap_b32 v{t1}, v{t2}
v_rcp_f32 v{t2}, v{t2}
""")
            for r in range(12):
                e(f"v_mul_f32 v{o+r}, v{o+r}, v{t2}")
            for r in range(4):
                e(f"v_cvt_pk_bf16_f32 v{pk+r}, v{o+2*r}, v{o+2*r+1}")
            e(f"""
v_cvt_pk_bf16_f32 v{last}, v{o+8}, v{o+9}
v_cvt_pk_bf16_f32 v{last+1}, v{o+10}, v{o+11}
v_permlane32_swap_b32 v{pk}, v{pk+2}
v_permlane32_swap_b32 v{pk+1}, v{pk+3}
""")
        assert done == npf
        t0 = sU[5]
        self.stO = []
        e(f"s_mul_i32 s{t0}, s{self.hp}, {5*CS}")
        for k in range(3):
            va = self.vQa
            if k == 2:
                e(f"v_lshl_or_b32 v{t1}, v{H}, 31, v{self.vQa}")
                va = t1
            st = I(f"buffer_store_dwordx4 {vr(self.OPK+4*k,4)}, v{va}, {srd(sO)}, s{t0} offen sc1")
            self.stO.append(st)
            e(st)
            if k < 2:
                e(f"s_add_u32 s{t0}, s{t0}, {2*CS}")
        e(self.stamp())

    def wave_flag(self, stores, base, sa, sb):
        t0, t1 = sU[2], sU[3]
        return [Wait(*stores)] + Is(f"""
s_lshl_b32 s{t0}, s{sa}, 4
s_add_u32 s{t0}, s{t0}, s{sb}
s_lshl_b32 s{t0}, s{t0}, 2
s_add_u32 s{t0}, s{t0}, s{sw}
s_lshl_b32 s{t0}, s{t0}, 2
s_add_u32 s{t0}, s{t0}, {base}
v_mov_b32 v38, s{sN}
v_lshlrev_b32 v39, 24, v0
buffer_store_dword v38, v39, {srd(sM)}, s{t0} offen sc1
""")

    vF, vFa = 14, 15

    def f2_text(self):
        return f"s_mov_b32 s{sU[3]}, {M_F2}\nbuffer_load_dword v{self.vF}, v{self.vFa}, {srd(sM)}, s{sU[3]} offen sc1\n"

    def f3_text(self):
        return f"s_mov_b32 s{sU[3]}, {M_F3}\nbuffer_load_dword v{self.vF}, v{self.vFa}, {srd(sM)}, s{sU[3]} offen sc1\n"

    vB, vB4, vA, vWo, vOa = 16, 17, 18, 19, 22
    vXo = 44
    vY = 47
    ARING = (24, 28, 32, 48, 52, 192, 196, 200, 204, 208, 212, 248, 252, 56, 60, 140)
    sB, sA, sWoo = 73, 74, 75

    def p3_setup(self):
        a, b = 38, 39
        t0, t1 = sU[2], sU[3]
        r2, c2 = 70, 71
        r2, c2 = sT[3], sT[4]
        self.r2, self.c2 = r2, c2
        L = Is(f"""
s_lshr_b32 s{t0}, s{sxcd}, 1
s_lshl_b32 s{t0}, s{t0}, 3
s_and_b32 s{t1}, s{si}, 7
s_add_u32 s{r2}, s{t0}, s{t1}
s_and_b32 s{t0}, s{sxcd}, 1
s_lshl_b32 s{t0}, s{t0}, 2
s_lshr_b32 s{t1}, s{si}, 3
s_add_u32 s{c2}, s{t0}, s{t1}
s_mul_i32 s{self.sB}, s{c2}, {74*5120}
s_add_u32 s{self.sWoo}, s{self.sB}, {54*5120}
s_mov_b32 s{self.sA}, 0
s_mul_i32 s{t0}, s{sw}, 5120
v_add_u32 v{self.vB}, s{t0}, v{self.vL16}
v_add_u32 v{self.vB4}, 0x1000, v{self.vB}
s_lshl_b32 s{t0}, s{sw}, 10
v_add_u32 v{self.vWo}, s{t0}, v{self.vL16}
v_and_b32 v{a}, 15, v0
v_lshrrev_b32 v{b}, 4, v0
v_lshlrev_b32 v{b}, 15, v{b}
v_lshl_add_u32 v{a}, v{a}, 4, v{b}
s_lshl_b32 s{t0}, s{r2}, 10
s_lshl_b32 s{t1}, s{sw}, 17
s_add_u32 s{t1}, s{t1}, s{t0}
v_add_u32 v{self.vA}, s{t1}, v{a}
s_lshl_b32 s{t1}, s{sw}, 8
s_add_u32 s{t1}, s{t1}, s{t0}
v_add_u32 v{self.vOa}, s{t1}, v{a}
s_lshr_b32 s{t0}, s{r2}, 1
s_lshl_b32 s{t0}, s{t0}, 8
v_lshl_add_u32 v{self.vFa}, v0, 2, s{t0}
s_mov_b32 s{sX+2}, {2048*1280}
""")
        return L

    def b_load(self, f):
        i, t = divmod(f, 5)
        d = ar(4 * (f % 64), 4)
        L = []
        if t < 4:
            L.append(I(f"buffer_load_dwordx4 {d}, v{self.vB}, {srd(sWP)}, s{self.sB} offen offset:{t*1024} sc1"))
        else:
            L.append(I(f"buffer_load_dwordx4 {d}, v{self.vB4}, {srd(sWP)}, s{self.sB} offen sc1"))
            L.append(I(f"s_add_u32 s{self.sB}, s{self.sB}, 20480"))
        return L

    def wo_dma(self, n):
        if not hasattr(self, 'WoD'):
            self.WoD = []
        base = WO_HI + n * 4096 if n < 20 else WO_LO + (n - 20) * 4096
        ld = I(f"buffer_load_dwordx4 v{self.vWo}, {srd(sWP)}, s{self.sWoo} offen sc1 lds")
        self.WoD.append(ld)
        return ([I(f"s_lshl_b32 m0, s{sw}, 10"), I(f"s_add_u32 m0, m0, {base}")],
                [ld, I(f"s_add_u32 s{self.sWoo}, s{self.sWoo}, 4096")])

    def p3_prefetch_units(self):
        b = [([], self.b_load(f)) for f in range(64)]
        w = [self.wo_dma(n) for n in range(self.cfg.get('wo_pf', 20))]
        return b + w

    AF = 192

    def a_load(self, i, rt):
        d = self.AF + 16 * (i & 3) + 4 * rt
        L = [I(f"buffer_load_dwordx4 {vr(d,4)}, v{self.vA}, {srd(sH)}, s{self.sA} offen offset:{rt*256} sc1")]
        if rt == 3:
            L.append(I(f"s_add_u32 s{self.sA}, s{self.sA}, {16*CS}"))
        return L

    def p3_first_a(self):
        return [self.a_load(i, rt) for i in range(4) for rt in range(4)]

    def phase3(self):
        e = self.e
        cfg = self.cfg
        Y = 64
        a, b, c = 38, 39, 40
        t0, t1 = sU[2], sU[3]
        XV = 144
        e(I("s_barrier"))
        late = [self.wo_dma(n) for n in range(cfg.get('wo_pf', 20), 25)]
        xa = Is(f"""
s_lshl_b32 s{t0}, s{self.r2}, 6
s_lshl_b32 s{t1}, s{sw}, 4
s_add_u32 s{t0}, s{t0}, s{t1}
s_mul_i32 s{t0}, s{t0}, 1280
s_mul_i32 s{t1}, s{self.c2}, 160
s_add_u32 s{t0}, s{t0}, s{t1}
""")
        for u in range(3):
            xa += Is(f"""
v_add_u32 v{a}, {64*u}, v0
v_mul_u32_u24 v{b}, 0xcd, v{a}
v_lshrrev_b32 v{b}, 11, v{b}
v_mul_u32_u24 v{c}, {1280-160}, v{b}
v_lshl_add_u32 v{c}, v{a}, 4, v{c}
v_add_u32 v{self.vXo+u}, s{t0}, v{c}
""")
        xa += Is(f"v_lshl_or_b32 v{self.vXo+2}, v{self.vHH}, 31, v{self.vXo+2}")
        xl = [I(f"buffer_load_dwordx4 {vr(XV+4*u,4)}, v{self.vXo+u}, {srd(sX)}, 0 offen") for u in range(3)]
        extra = {0: late, 1: [([], self.b_load(f)) for f in range(64, 69)], 2: [([], self.b_load(69))] + self.units(xa),
                 3: self.units(xl),
                 cfg['f3_step']: self.units(self.wave_flag(self.stO, M_F3, self.rA, self.hp)),
                 11: self.units(self.f3_text())}
        for i in range(14):
            q = list(extra.get(i, []))
            for rt in range(4):
                for t in range(5):
                    acc = vr(Y + 20 * rt + 4 * t, 4)
                    f = 5 * i + t
                    e(I(f"v_mfma_f32_16x16x32_bf16 {acc}, {ar(4*(f%64),4)}, {vr(self.AF+16*(i&3)+4*rt,4)}, {'0' if i == 0 else acc}"))
                    left = 20 - (rt * 5 + t)
                    take = -(-len(q) // left) if q else 0
                    for (pre, post) in q[:take]:
                        e(pre, post)
                    q = q[take:]
                if i + 4 < 14:
                    e(self.a_load(i + 4, rt))
        e(self.stamp())
        e(self.retry(self.f3_text(), self.tag_check([self.vF])))
        OF = 176
        e(f"s_mov_b32 s{t0}, 0")
        for ks in range(20):
            e(f"buffer_load_dwordx4 {vr(OF+4*ks,4)}, v{self.vOa}, {srd(sO)}, s{t0} offen sc1")
            if ks < 19:
                e(f"s_add_u32 s{t0}, s{t0}, {4*CS}")
        vw = self.vY
        G = 156
        for rt in range(4):
            e(I(f"s_cmp_eq_u32 s{sw}, {rt}"))
            e(ghost("s_cbranch_scc1", f"""
s_sub_u32 s{t0}, s{sw}, {rt+1}
s_and_b32 s{t0}, s{t0}, 3
s_mul_i32 s{t0}, s{t0}, 5120
s_add_u32 s{t0}, s{t0}, {rt*15360}
v_add_u32 v{vw}, s{t0}, v{self.vL16}
""" + "\n".join(f"ds_write_b128 v{vw}, {vr(Y+20*rt+4*t,4)} offset:{t*1024}" for t in range(5)), self.lab("wr")))
            e(I(f"s_cmp_lg_u32 s{sw}, {rt}"))
            e(ghost("s_cbranch_scc1", "\n".join(f"v_mov_b32 v{G+r}, v{Y+20*rt+r}" for r in range(20)), self.lab("own")))
        e(f"s_mul_i32 s{t0}, s{sw}, 15360\nv_add_u32 v{vw}, s{t0}, v{self.vL16}")
        e(Wait(*self.WoD), "s_waitcnt lgkmcnt(0)\ns_barrier")
        for k in range(3):
            for t in range(5):
                e(f"ds_read_b128 {vr(Y+20*k+4*t,4)}, v{vw} offset:{k*5120+t*1024}")
        for k in range(3):
            for r in range(0, 20, 2):
                e(f"v_pk_add_f32 {vr(G+r,2)}, {vr(G+r,2)}, {vr(Y+20*k+r,2)}")
        T = Y
        for r in range(0, 20, 2):
            e(f"v_cvt_pk_bf16_f32 v{T+r}, v{G+r}, v{G+r+1}")
        for r in range(0, 20, 2):
            e(f"v_lshlrev_b32 v{G+r}, 16, v{T+r}\nv_and_b32 v{G+r+1}, 0xffff0000, v{T+r}")
        for r in range(20):
            e(f"v_mul_f32 v{T+r}, 0xbfb8aa3b, v{G+r}")
        for r in range(20):
            e(f"v_exp_f32 v{T+r}, v{T+r}")
        for r in range(20):
            e(f"v_add_f32 v{T+r}, 1.0, v{T+r}")
        for r in range(20):
            e(f"v_rcp_f32 v{T+r}, v{T+r}")
        for r in range(20):
            e(f"v_mul_f32 v{G+r}, v{G+r}, v{T+r}")
        for r in range(0, 20, 2):
            e(f"v_cvt_pk_bf16_f32 v{T+r}, v{G+r}, v{G+r+1}")
        for r in range(0, 20, 2):
            e(f"v_lshlrev_b32 v{G+r}, 16, v{T+r}\nv_and_b32 v{G+r+1}, 0xffff0000, v{T+r}")
        e(self.stamp())
        SA, BF = 64, 84
        v1, v2 = self.vY + 1, self.vY + 2
        e(f"v_add_u32 v{v1}, {WO_LO}, v{self.vL16}\nv_add_u32 v{v2}, {WO_LO+65536}, v{self.vL16}")

        def bread(ks, t):
            f = 5 * ks + t
            off = (WO_HI + 1024 * f if f < 80 else WO_LO + 1024 * (f - 80)) - WO_LO
            v = v1 if off < 65536 else v2
            return I(f"ds_read_b128 {vr(BF+20*(ks&1)+4*t,4)}, v{v} offset:{off&0xffff}")
        e([bread(0, t) for t in range(5)])
        for ks in range(20):
            for t in range(5):
                acc = vr(SA + 4 * t, 4)
                e(I(f"v_mfma_f32_16x16x32_bf16 {acc}, {vr(BF+20*(ks&1)+4*t,4)}, {vr(OF+4*ks,4)}, {'0' if ks == 0 else acc}"))
                if ks < 19:
                    e(bread(ks + 1, t))
        T = 124
        e(f"""
v_and_b32 v{a}, 15, v0
v_mul_u32_u24 v{a}, 0xa0, v{a}
v_lshrrev_b32 v{b}, 4, v0
v_lshl_add_u32 v{a}, v{b}, 3, v{a}
s_mul_i32 s{t0}, s{sw}, 15360
v_add_u32 v{a}, s{t0}, v{a}
""")
        for r in range(0, 20, 2):
            e(f"v_cvt_pk_bf16_f32 v{T+r}, v{SA+r}, v{SA+r+1}")
        for r in range(0, 20, 2):
            e(f"v_lshlrev_b32 v{SA+r}, 16, v{T+r}\nv_and_b32 v{SA+r+1}, 0xffff0000, v{T+r}")
        for r in range(0, 20, 2):
            e(f"v_pk_mul_f32 {vr(SA+r,2)}, {vr(SA+r,2)}, {vr(G+r,2)}")
        wr = []
        for t in range(5):
            e(f"v_cvt_pk_bf16_f32 v{T+2*t}, v{SA+4*t}, v{SA+4*t+1}\nv_cvt_pk_bf16_f32 v{T+2*t+1}, v{SA+4*t+2}, v{SA+4*t+3}")
            x = I(f"ds_write_b64 v{a}, {vr(T+2*t,2)} offset:{t*32}")
            wr.append(x)
            e(x)
        e(Wait(*wr))
        for u in range(3):
            e(f"ds_read_b128 {vr(SA+4*u,4)}, v{vw} offset:{u*1024}")
        for u in range(3):
            for r in range(4):
                p, x, o = SA + 4 * u + r, XV + 4 * u + r, 84
                e(f"""
v_lshlrev_b32 v{o}, 16, v{p}
v_and_b32 v{o+1}, 0xffff0000, v{p}
v_lshlrev_b32 v{o+2}, 16, v{x}
v_and_b32 v{o+3}, 0xffff0000, v{x}
v_pk_add_f32 {vr(o,2)}, {vr(o,2)}, {vr(o+2,2)}
v_cvt_pk_bf16_f32 v{p}, v{o}, v{o+1}
""")
            e(f"buffer_store_dwordx4 {vr(SA+4*u,4)}, v{self.vXo+u}, {srd(sOUT)}, 0 offen")
        e(self.stamp())

    def finish(self):
        e = self.e
        if self.stamps:
            e("s_waitcnt vmcnt(0)")
            self.nstamp = 13
            e(self.stamp())
            e(f"s_memrealtime s[22:23]\ns_waitcnt lgkmcnt(0)")
            e(f"""
v_writelane_b32 v1, s22, 15
s_lshl_b32 s3, s2, 2
s_add_u32 s3, s3, s{sw}
s_lshl_b32 s3, s3, 6
s_add_u32 s3, s3, {M_STAMP}
v_lshrrev_b32 v38, 4, v0
v_lshlrev_b32 v38, 28, v38
v_lshl_or_b32 v39, v0, 2, v38
buffer_store_dword v1, v39, {srd(sM)}, s3 offen
""")
        e("s_waitcnt vmcnt(0) lgkmcnt(0)")

    def build(self):
        self.prologue()
        self.phase1()
        if self.stop not in ('p1a', 'p1b'):
            self.attention()
            if self.stop != 'attn':
                self.phase3()
        self.finish()
        lines = resolve(self.P, verbose=True)
        body = "\n".join(lines) + "\nL_end:\ns_endpgm\n" + "\n".join(self.slow) + "\nL_last:\ns_endpgm\n"
        head = open('recurrent_scan__sliding_block__dense_activation_relu__prompt.s.ref').read().split('\n')
        head = [l for l in head if l.startswith(';   offset') or l.startswith('; Kernarg')]
        return "\n".join(head) + f"""
; One persistent launch, one workgroup per CU.  Written with a generator script (hand-scheduled phases).
; @launch grid=(256,1,1) block=(256,1,1) lds={LDS_BYTES}
.amdgcn_target "amdgcn-amd-amdhsa--gfx950"
.text
.globl {NAME}
.p2align 8
.type {NAME},@function
{NAME}:
{body}
.section .rodata,"a"
.p2align 6
.amdhsa_kernel {NAME}
  .amdhsa_next_free_vgpr 512
  .amdhsa_next_free_sgpr 102
  .amdhsa_accum_offset 256
  .amdhsa_group_segment_fixed_size 0
  .amdhsa_kernarg_size 72
  .amdhsa_user_sgpr_count 2
  .amdhsa_user_sgpr_kernarg_segment_ptr 1
  .amdhsa_system_sgpr_workgroup_id_x 1
.end_amdhsa_kernel
"""


if __name__ == '__main__':
    import argparse, json
    ap = argparse.ArgumentParser()
    ap.add_argument('-o', default='k.s')
    ap.add_argument('--stop')
    ap.add_argument('--stamps', action='store_true')
    ap.add_argument('--cfg', default='{}')
    a = ap.parse_args()
    open(a.o, 'w').write(Gen(a.stop, a.stamps, json.loads(a.cfg)).build())
```
